```python
import torch

def _softmax(x, axis=-1):
    return torch.softmax(x, dim=axis)
def _gelu(x):
    return torch.nn.functional.gelu(x, approximate="tanh")
def _silu(x):
    return torch.nn.functional.silu(x)
def _sigmoid(x):
    return torch.sigmoid(x)
def _layernorm(x, axis=-1, eps=1e-5):
    m = x.mean(dim=axis, keepdim=True)
    v = x.var(dim=axis, keepdim=True, unbiased=False)
    return (x - m) / torch.sqrt(v + eps)
def _scatter_add(tgt, idx, src, axis=0):
    return tgt.clone().index_add_(axis, idx, src)
def _segment_sum(src, seg, n):
    out = torch.zeros((n,) + src.shape[1:], dtype=src.dtype)
    return out.index_add_(0, seg, src)
def _pad(x, pw):
    flat = tuple(v for pair in reversed(pw) for v in pair)
    return torch.nn.functional.pad(x, flat)

kernel_name = 'gated_mix__spectral_gfnet__swiglu_ffn__prompt'

def setup_inputs():

    _w = (lambda a: (lambda t: t.to(torch.bfloat16) if t.is_floating_point() else t)(torch.as_tensor(a)))
    def _A_setup():
        B, S, D = 1, 2048, 576
        Df = D // 2 + 1
        return {
            "x": _w((lambda *s: torch.randn(*s, dtype=torch.bfloat16) * 0.05)(B, S, D)),
            "w_r": _w((lambda *s: torch.randn(*s, dtype=torch.bfloat16) * 1.6)(S, Df) * 0.02),
            "w_i": _w((lambda *s: torch.randn(*s, dtype=torch.bfloat16) * 1.6)(S, Df) * 0.02),
        }
    _A_in = _A_setup()

    def _B_setup():
        B, S, D, F = 1, 2048, 576, 4608
        return {
            "x": _w((lambda *s: torch.randn(*s, dtype=torch.bfloat16) * 0.05)(B, S, D)),
            "w_gate": _w((lambda *s: torch.randn(*s, dtype=torch.bfloat16) * 0.05)(D, F)),
            "w_up": _w((lambda *s: torch.randn(*s, dtype=torch.bfloat16) * 0.05)(D, F)),
            "w_down": _w((lambda *s: torch.randn(*s, dtype=torch.bfloat16) * 0.05)(F, D)),
        }
    _B_in = _B_setup()

    return {
        "A_x": _A_in["x"],
        "A_w_r": _A_in["w_r"],
        "A_w_i": _A_in["w_i"],
        "B_x": _B_in["x"],
        "B_w_gate": _B_in["w_gate"],
        "B_w_up": _B_in["w_up"],
        "B_w_down": _B_in["w_down"],
        "gate_w": _w((lambda *s: torch.randn(*s, dtype=torch.bfloat16) * 0.05)(576) * 16.0),
    }

def reference(A_x, A_w_r, A_w_i, B_x, B_w_gate, B_w_up, B_w_down, gate_w):
    def _A_ref(x, w_r, w_i):
        B, S, D = x.shape
        X = (lambda x, axes=(-2,-1): torch.fft.rfft2(x.float(), dim=axes))(x, axes=(-2, -1))
        W = w_r + 1j * w_i
        X = X * W
        y = (lambda x, s, axes=(-2,-1): torch.fft.irfft2(x, s=s, dim=axes).to(torch.bfloat16))(X, (S, D), axes=(-2, -1))
        return y

    def _B_ref(x, w_gate, w_up, w_down):
        g = _silu(x @ w_gate)
        u = x @ w_up
        return (g * u) @ w_down

    x = A_x
    g = _sigmoid((x * gate_w).sum(-1, keepdims=True))
    a = _A_ref(x, A_w_r, A_w_i)
    b = _B_ref(x, B_w_gate, B_w_up, B_w_down)
    return g * a + (1 - g) * b
```

```python
from em import Em
from k1 import *

def gen_a2(name):
    e = Em()
    sWS = 8
    sWave, sCol, sWcol, sMode, sT0, sT1, sC = 12, 13, 14, 15, 16, 17, 18
    vLane, vQ, vL, vOff, vWo, vLw, vLr, vT, vU = 1, 2, 3, 4, 5, 6, 7, 8, 9
    FB = 16
    FS = 48
    TW1 = 80
    TW2 = 96
    XD = 112
    WD = 144
    DA = 152
    PK = 168
    SV = 176
    TM = 184
    fb = lambda var, t: f"v[{FB+var*16+t*4}:{FB+var*16+t*4+3}]"
    fs = lambda var, tile, t: f"v[{FS+var*16+tile*8+t*4}:{FS+var*16+tile*8+t*4+3}]"
    xd = lambda bt, t: f"v[{XD+bt*16+t*4}:{XD+bt*16+t*4+3}]"
    da = lambda x, var: DA + x*8 + var*4
    r4 = lambda b: f"v[{b}:{b+3}]"
    e.raw(f".globl {name}"); e.raw(".p2align 8"); e.raw(f".type {name},@function"); e.label(name)
    e("s_cmp_ge_u32 s2, 288")
    e(f"s_cbranch_scc1 {name}_end")
    e("s_load_dwordx2 s[4:5], s[0:1], 80")
    e(f"v_lshrrev_b32 v{vQ}, 6, v0")
    e(f"v_and_b32 v{vLane}, 63, v0")
    e(f"v_readfirstlane_b32 s{sWave}, v{vQ}")
    e(f"v_lshrrev_b32 v{vQ}, 4, v{vLane}")
    e(f"v_and_b32 v{vL}, 15, v{vLane}")
    e(f"v_lshlrev_b32 v{vOff}, 4, v{vL}")
    e(f"v_lshl_add_u32 v{vWo}, v{vQ}, 10, v{vOff}")
    e(f"v_lshl_add_u32 v{vOff}, v{vQ}, 9, v{vOff}")
    e(f"s_lshl_b32 s{sT0}, s{sWave}, 8")
    e(f"v_add_u32 v{vWo}, s{sT0}, v{vWo}")
    e(f"v_lshlrev_b32 v{vLr}, 4, v{vLane}")
    e(f"s_lshl_b32 s{sT0}, s{sWave}, 11")
    e(f"v_add_u32 v{vLw}, s{sT0}, v{vLr}")
    e(f"s_lshl_b32 s{sCol}, s2, 13")
    e(f"s_add_u32 s{sWcol}, s{sCol}, {WS_WT}")
    e(f"s_cmp_eq_u32 s2, 0")
    e(f"s_cselect_b32 s{sMode}, 1, 0")
    e("s_waitcnt lgkmcnt(0)")
    srd(e, sWS, 4, WS_SIZE)
    def loads():
        e(f"s_add_u32 s{sT0}, s{sCol}, {WS_X1}")
        e(f"s_add_u32 s{sT1}, s{sCol}, {WS_X1+4096}")
        ids = {}
        for t in range(4):
            for bt in range(2):
                so = sT0 if t < 2 else sT1
                ids[(bt, t)] = e(f"buffer_load_dwordx4 {xd(bt, t)}, v{vOff}, s[{sWS}:{sWS+3}], s{so} offen offset:{(t%2)*2048 + bt*256}")
        e(f"s_add_u32 s{sT1}, s{sWcol}, 4096")
        e(f"buffer_load_dwordx4 {r4(WD)}, v{vWo}, s[{sWS}:{sWS+3}], s{sWcol} offen")
        ids["w"] = e(f"buffer_load_dwordx4 {r4(WD+4)}, v{vWo}, s[{sWS}:{sWS+3}], s{sT1} offen")
        return ids
    loads()
    cW, k0 = TM, TM+1
    e(f"s_lshl_b32 s{sT0}, s{sWave}, 4")
    e(f"v_add_u32 v{cW}, s{sT0}, v{vL}")
    e(f"v_lshlrev_b32 v{k0}, 2, v{vQ}")
    def sincos_pack(idx_reg, kconst, mask, scale, d0, d1):
        e(f"v_add_u32 v{vT}, {kconst}, v{k0}")
        e(f"v_mul_u32_u24 v{vT}, v{idx_reg}, v{vT}")
        e(f"v_and_b32 v{vT}, {mask}, v{vT}")
        e(f"v_cvt_f32_u32 v{vT}, v{vT}")
        e(f"v_mul_f32 v{vT}, {scale}, v{vT}")
        e(f"v_sin_f32 v{vU}, v{vT}")
        e(f"v_cos_f32 v{vT}, v{vT}")
        e(f"v_cvt_pk_bf16_f32 v{d0}, v{vT}, v{vU}")
        e(f"v_cvt_pk_bf16_f32 v{d1}, -v{vU}, v{vT}")
    for t in range(4):
        for ii in range(4):
            sincos_pack(cW, 16*t + ii, 63, "0x3c800000", FB + t*4 + ii, FB + 16 + t*4 + ii)
    e(f"v_add_u32 v{TM+2}, 16, v{vL}")
    for tile in range(2):
        for t in range(2):
            for ii in range(4):
                sincos_pack(vL if tile == 0 else TM+2, 16*t + ii, 31, "0x3d000000", FS + tile*8 + t*4 + ii, FS + 16 + tile*8 + t*4 + ii)
    e(f"v_add_u32 v{TM+3}, s{sT0}, v{k0}")
    for bt in range(2):
        for r in range(4):
            for (tw, a_, ac, b_) in ((TW1, k0, 16*bt + r, cW), (TW2, TM+3, r, vL if bt == 0 else TM+2)):
                d = tw + bt*8 + r*2
                e(f"v_add_u32 v{vT}, {ac}, v{a_}")
                e(f"v_mul_u32_u24 v{vT}, v{b_}, v{vT}")
                e(f"v_cvt_f32_u32 v{vT}, v{vT}")
                e(f"v_mul_f32 v{vT}, 0x3a000000, v{vT}")
                e(f"v_sin_f32 v{d+1}, v{vT}")
                e(f"v_cos_f32 v{d}, v{vT}")
    e.label(f"{name}_col")
    e.wait_all()
    e(f"s_cmp_eq_u32 s{sMode}, 0")
    e(f"s_cbranch_scc1 {name}_go")
    e(f"s_cmp_eq_u32 s{sMode}, 1")
    e(f"s_cselect_b32 s{sT0}, 0, 16")
    for k in range(32):
        e(f"v_bfe_u32 v{XD+k}, v{XD+k}, s{sT0}, 16")
    e.label(f"{name}_go")
    e("s_nop 1")
    def twiddle(tw):
        for bt in range(2):
            for r in range(4):
                re, im = da(bt, 0) + r, da(bt, 1) + r
                c, s = tw + bt*8 + r*2, tw + bt*8 + r*2 + 1
                t0, t1 = TM + 4 + (r % 2)*2, TM + 5 + (r % 2)*2
                e(f"v_mul_f32 v{t0}, v{re}, v{c}")
                e(f"v_mul_f32 v{t1}, v{im}, v{c}")
                e(f"v_fmac_f32 v{t0}, v{im}, v{s}")
                e(f"v_fma_f32 v{t1}, -v{re}, v{s}, v{t1}")
                e(f"v_cvt_pk_bf16_f32 v{PK+bt*4+r}, v{t0}, v{t1}")
    def mm(nt, A, B):
        for t in range(nt):
            for x in range(2):
                for var in range(2):
                    acc = r4(da(x, var))
                    e(f"v_mfma_f32_16x16x32_bf16 {acc}, {A(x, var, t)}, {B(x, var, t)}, {'0' if t == 0 else acc}")
    mm(4, lambda x, v, t: xd(x, t), lambda x, v, t: fb(v, t))
    twiddle(TW1)
    mm(2, lambda x, v, t: fs(v, x, t), lambda x, v, t: r4(PK + t*4))
    for dt in range(2):
        for r in range(4):
            re, im = da(dt, 0) + r, da(dt, 1) + r
            w = WD + dt*4 + r
            t0, t1 = TM + 4 + (r % 2)*2, TM + 5 + (r % 2)*2
            e(f"v_and_b32 v{vT}, 0xffff0000, v{w}")
            e(f"v_lshlrev_b32 v{w}, 16, v{w}")
            e(f"v_mul_f32 v{t0}, v{re}, v{w}")
            e(f"v_mul_f32 v{t1}, v{im}, v{w}")
            e(f"v_fma_f32 v{t0}, -v{im}, v{vT}, v{t0}")
            e(f"v_fmac_f32 v{t1}, v{re}, v{vT}")
            e(f"v_cvt_pk_bf16_f32 v{PK+dt*4+r}, v{t0}, -v{t1}")
    mm(2, lambda x, v, t: r4(PK + t*4), lambda x, v, t: fs(v, x, t))
    twiddle(TW2)
    for bt in range(2):
        e(f"ds_write_b128 v{vLw}, {r4(PK+bt*4)} offset:{bt*1024}")
    e.wait_all(vm=False)
    e("s_barrier")
    for t in range(4):
        for bt in range(2):
            e(f"ds_read_b128 {xd(bt, t)}, v{vLr} offset:{t*2048 + bt*1024}")
    e.wait_all(vm=False)
    mm(4, lambda x, v, t: fb(v, t), lambda x, v, t: xd(x, t))
    e(f"s_cmp_eq_u32 s{sMode}, 1")
    e(f"s_cbranch_scc0 {name}_fin")
    for bt in range(2):
        for r in range(4):
            e(f"v_mov_b32 v{SV+bt*4+r}, v{da(bt, 0)+r}")
    e(f"s_mov_b32 s{sMode}, 2")
    e(f"s_mov_b32 s{sWcol}, {WS_WT + 288*8192}")
    e("s_barrier")
    loads()
    e(f"s_branch {name}_col")
    e.label(f"{name}_fin")
    e.fence()
    e(f"s_cmp_eq_u32 s{sMode}, 2")
    e(f"s_cbranch_scc0 {name}_st")
    for bt in range(2):
        for r in range(4):
            e(f"v_mov_b32 v{da(bt, 1)+r}, v{da(bt, 0)+r}")
            e(f"v_mov_b32 v{da(bt, 0)+r}, v{SV+bt*4+r}")
    e.label(f"{name}_st")
    for bt in range(2):
        for r in range(4):
            e(f"v_cvt_pk_bf16_f32 v{PK+bt*4+r}, v{da(bt, 0)+r}, v{da(bt, 1)+r}")
    e(f"s_lshl_b32 s{sT0}, s{sWave}, 11")
    e(f"s_add_u32 s{sT0}, s{sT0}, s{sCol}")
    e(f"s_add_u32 s{sT0}, s{sT0}, {WS_Z}")
    for bt in range(2):
        e(f"buffer_store_dwordx4 {r4(PK+bt*4)}, v{vOff}, s[{sWS}:{sWS+3}], s{sT0} offen offset:{bt*256}")
    e.label(f"{name}_end")
    e("s_endpgm")
    return e
```

```python
import re

_REG = re.compile(r'^(-?)(abs\()?([vas])(?:(\d+)|\[(\d+):(\d+)\])\)?$')
TRANS = ("v_exp_f32", "v_log_f32", "v_rcp_f32", "v_rsq_f32", "v_sqrt_f32", "v_sin_f32", "v_cos_f32")

def regs_of(op):
    op = op.strip()
    if op in ("vcc",): return [("s", 106), ("s", 107)]
    if op == "m0": return [("s", 124)]
    if op == "exec": return [("s", 126), ("s", 127)]
    m = _REG.match(op)
    if not m: return []
    k = m.group(3)
    if m.group(4) is not None: return [(k, int(m.group(4)))]
    return [(k, i) for i in range(int(m.group(5)), int(m.group(6)) + 1)]

def split_ops(rest):
    out, depth, cur = [], 0, ""
    for ch in rest:
        if ch == "[": depth += 1
        if ch == "]": depth -= 1
        if ch == "," and depth == 0:
            out.append(cur.strip()); cur = ""
        else: cur += ch
    if cur.strip(): out.append(cur.strip())
    if out:
        out[-1:] = [out[-1].split(" ")[0]] + out[-1].split(" ")[1:]
    return out

class Ins:
    __slots__ = ("text", "op", "kind", "w", "r", "srcc", "passes", "wide", "states", "lds")
    def __init__(self, text):
        self.text = text
        t = text.strip()
        sp = t.split(None, 1)
        self.op = op = sp[0]
        ops = split_ops(sp[1]) if len(sp) > 1 else []
        self.w, self.r, self.srcc, self.passes, self.wide, self.states, self.lds = [], [], [], 0, False, 1, False
        R = [regs_of(o) for o in ops]
        if op.startswith("v_mfma"):
            self.kind = "mfma"; self.w = R[0]; self.r = R[1] + R[2]; self.srcc = R[3]
            self.passes = 8 if "32x32" in op else 4
        elif op.startswith("v_cmp"):
            self.kind = "valu"; self.w = R[0]; self.r = sum(R[1:], [])
        elif op in ("v_readfirstlane_b32", "v_readlane_b32"):
            self.kind = "valu"; self.w = R[0]; self.r = sum(R[1:], [])
        elif op.startswith(("v_add_co", "v_sub_co", "v_addc_co", "v_subb_co")):
            self.kind = "valu"; self.w = R[0] + R[1]; self.r = sum(R[2:], [])
        elif op.startswith(("v_swap", "v_permlane")):
            self.kind = "valu"; self.w = R[0] + R[1]; self.r = R[0] + R[1]
        elif op.startswith(("v_fmac", "v_dot2c")):
            self.kind = "valu"; self.w = R[0]; self.r = sum(R, [])
        elif op.startswith("v_"):
            self.kind = "valu"; self.w = R[0]; self.r = sum(R[1:], [])
        elif op.startswith(("buffer_load", "global_load")):
            self.kind = "vmem"
            if "lds" in ops or op.startswith("global_load_lds"):
                self.lds = True; self.r = sum(R, []) + [("s", 124)]
            else:
                self.w = R[0]; self.r = sum(R[1:], [])
        elif op.startswith(("buffer_store", "global_store", "buffer_atomic", "global_atomic")):
            self.kind = "vmem"; self.r = sum(R, [])
            if op.endswith(("x3", "x4")):
                self.wide = True
                self.srcc = R[0] if op.startswith("buffer") else R[1]
        elif op.startswith(("buffer_wbl2", "buffer_inv")):
            self.kind = "vmem"
        elif op.startswith("ds_read") or op.startswith("ds_bpermute") or op.startswith("ds_swizzle"):
            self.kind = "ds"; self.w = R[0]; self.r = sum(R[1:], [])
        elif op.startswith("ds_"):
            self.kind = "ds"; self.r = sum(R, [])
        elif op == "s_nop":
            self.kind = "nop"; self.states = int(ops[0], 0) + 1
        elif op.startswith(("s_cmp", "s_bitcmp", "s_waitcnt", "s_barrier", "s_branch", "s_cbranch", "s_endpgm", "s_setprio", "s_sleep")):
            self.kind = "salu"; self.r = sum(R, [])
        elif op.startswith("s_"):
            self.kind = "salu"; self.w = R[0] if R else []; self.r = sum(R[1:], [])
            if "saveexec" in op: self.w = self.w + [("s", 126), ("s", 127)]
        else:
            raise ValueError("unknown instr " + text)

def need(prev, cur):
    n = 0
    pw = set(prev.w)
    if prev.kind == "valu":
        vw = {x for x in pw if x[0] != "s"}
        sw = {x for x in pw if x[0] == "s"}
        if cur.kind == "mfma" and vw & set(cur.r + cur.srcc): n = max(n, 2)
        if cur.kind == "valu":
            if prev.op in TRANS and vw & set(cur.r): n = max(n, 1)
            if sw & set(cur.r): n = max(n, 4 if cur.op in ("v_readlane_b32", "v_writelane_b32") else 2)
            if cur.op in ("v_readfirstlane_b32", "v_readlane_b32") and vw & set(cur.r): n = max(n, 1)
            if (cur.op.startswith("v_permlane") or "dpp" in cur.text or "row_" in cur.text or "quad_perm" in cur.text) and vw & set(cur.r): n = max(n, 2)
            if ("sdwa" in prev.text or "op_sel" in prev.text) and vw & set(cur.r + cur.w): n = max(n, 1)
        if cur.kind == "vmem" and sw & set(cur.r): n = max(n, 5)
        if cur.kind == "salu" and sw & set(cur.r): n = max(n, 1)
    if prev.kind == "mfma":
        full = {4: 8, 8: 12}[prev.passes]
        if cur.kind == "mfma":
            if pw & set(cur.r): n = max(n, full)
            if pw & set(cur.srcc):
                if not (cur.srcc == prev.w and cur.passes == prev.passes): n = max(n, full - 2)
            elif pw & set(cur.w): n = max(n, full - 2)
        elif cur.kind in ("valu", "vmem", "ds"):
            if pw & set(cur.r + cur.w): n = max(n, full)
            if cur.kind == "valu" and set(prev.srcc) & set(cur.w): n = max(n, {4: 3, 8: 7}[prev.passes])
    if prev.kind == "salu" and ("s", 124) in pw and cur.kind == "vmem" and cur.lds: n = max(n, 1)
    if prev.kind == "vmem" and prev.wide and set(prev.srcc) & set(cur.w): n = max(n, 2)
    return n

class Em:
    def __init__(self):
        self.lines = []
        self.hist = []
        self.vm = 0; self.lg = 0
        self.vm_done = -1; self.lg_done = -1
        self.nops = 0
        self.count = 0
        self.vm_pub = -1
        self.lg_pub = -1
        self.maxvm = 0
    def raw(self, s):
        self.lines.append(s)
    def label(self, l):
        self.lines.append(l + ":")
    def comment(self, s):
        self.lines.append("; " + s)
    def __call__(self, text):
        ins = Ins(text)
        dist = 0; pad = 0
        for p in reversed(self.hist):
            nd = need(p, ins)
            if nd > dist: pad = max(pad, nd - dist)
            dist += p.states
            if dist >= 13: break
        if pad:
            self.nops += pad
            self._emit(Ins(f"s_nop {pad-1}"))
        self._emit(ins)
        if ins.kind == "vmem":
            self.vm += 1
            self.maxvm = max(self.maxvm, self.vm - 1 - self.vm_done)
            assert self.vm - 1 - self.vm_done <= 63, "too many vm outstanding"
            return self.vm - 1
        if ins.kind == "ds":
            self.lg += 1
            return self.lg - 1
        if ins.op == "s_barrier":
            self.vm_pub = self.vm_done; self.lg_pub = self.lg_done
        return None
    def _emit(self, ins):
        self.lines.append("  " + ins.text)
        self.hist.append(ins)
        if len(self.hist) > 16: self.hist.pop(0)
        self.count += 1
    def wait(self, vm=None, lg=None):
        parts = []
        if vm is not None and vm > self.vm_done:
            n = self.vm - 1 - vm
            assert n <= 63
            parts.append(f"vmcnt({n})"); self.vm_done = vm
        if lg is not None and lg > self.lg_done:
            n = self.lg - 1 - lg
            if n > 15:
                n = 15; lg = self.lg - 1 - 15
            parts.append(f"lgkmcnt({n})"); self.lg_done = lg
        if parts:
            self("s_waitcnt " + " ".join(parts)); return True
        return False
    def will_wait(self, vm=None, lg=None):
        return (vm is not None and vm > self.vm_done) or (lg is not None and lg > self.lg_done)
    def wait_all(self, vm=True, lg=True):
        parts = []
        if vm: parts.append("vmcnt(0)"); self.vm_done = self.vm - 1
        if lg: parts.append("lgkmcnt(0)"); self.lg_done = self.lg - 1
        self("s_waitcnt " + " ".join(parts))
    def fence(self):
        self("s_nop 7"); self("s_nop 4")
    def text(self):
        return "\n".join(self.lines) + "\n"
```

```python
from em import Em
from collections import deque

INF = 10**9
WS_P = 0
WS_H = 0x2400000
WS_X1 = 0x3600000
WS_Z = 0x3900000
WS_WT = 0x3C00000
WS_CF = 0x3F00000
WS_SIZE = 1 << 28
OOB = 0x7FFF0000
LDS_X = 147456
K1_LDS = 163840

KB1 = 32 * 9216

class Item:
    __slots__ = ("fn", "cost", "earliest", "latest", "ready")
    def __init__(self, fn, cost=1, earliest=0, latest=INF, ready=None):
        self.fn, self.cost, self.earliest, self.latest, self.ready = fn, cost, earliest, latest, ready

def srd(e, base, lo, size):
    e(f"s_mov_b32 s{base}, s{lo}")
    e(f"s_and_b32 s{base+1}, s{lo+1}, 0xffff")
    e(f"s_mov_b32 s{base+2}, {size}")
    e(f"s_mov_b32 s{base+3}, 0x20000")

def code_prefetch(e, nbytes, tmp):
    e("s_getpc_b64 s[4:5]")
    e(f"v_lshlrev_b32 v{tmp}, 7, v0")
    e(f"v_mov_b32 v{tmp+3}, s5")
    e(f"v_add_co_u32 v{tmp+2}, vcc, s4, v{tmp}")
    e(f"v_addc_co_u32 v{tmp+3}, vcc, 0, v{tmp+3}, vcc")
    done = 0
    e(f"global_load_dword v{tmp}, v[{tmp+2}:{tmp+3}], off")
    done = 32768
    while done < nbytes:
        step = min(32768, nbytes - done)
        e(f"v_add_co_u32 v{tmp+2}, vcc, {step}, v{tmp+2}")
        e(f"v_addc_co_u32 v{tmp+3}, vcc, 0, v{tmp+3}, vcc")
        e(f"global_load_dword v{tmp+1}, v[{tmp+2}:{tmp+3}], off")
        done += step

def gen_k1(name, code_bytes=32768, D=6, pstore=""):
    e = Em()
    RdA, RdB, DvA, DvB = 1, 7, 13, 17
    vX, vL16, vX1 = 21, 22, 23
    T = 24
    AF = 32; NB = 8
    ACC = [64, 128]
    XT = 192; SP = 224
    sX, sW1, sWD, sWS, sWR, sWI, sGW = 36, 40, 44, 48, 52, 56, 60
    sWave, sI, sJ, sMT, sFS = 64, 65, 66, 67, 68
    sXo = 69
    sOff, sLds, sColWrap, sUst = 73, 74, 75, 76
    sNL2E = 77
    sH, sH0, sHL = 78, 79, 80
    sPb = 81
    sX1a, sX1b = 82, 83
    sT0, sT1, sT2, sT3 = 84, 85, 86, 87
    sN, sRow0, sCol1 = 88, 89, 90
    sWTr = 91
    sLds0 = 95
    sWrapN = 96

    def xreg(t, st):
        k = t * 4 + st
        if k < 64: return f"a[{4*k}:{4*k+3}]"
        return f"v[{XT+4*(k-64)}:{XT+4*(k-64)+3}]"
    def hreg(n, st):
        k = n * 4 + st
        return f"a[{4*k}:{4*k+3}]"

    e.raw(f".globl {name}")
    e.raw(".p2align 8")
    e.raw(f".type {name},@function")
    e.label(name)
    e("s_cmp_ge_u32 s2, 256")
    e(f"s_cbranch_scc1 {name}_end")
    e("s_load_dwordx16 s[16:31], s[0:1], 0")
    e("s_load_dwordx2 s[32:33], s[0:1], 80")
    code_prefetch(e, code_bytes, SP)
    vLane, vQ, vL, vR4, vC, vF = T, T+1, T+2, T+3, T+4, T+5
    e(f"v_lshrrev_b32 v{vQ}, 6, v0")
    e(f"v_and_b32 v{vLane}, 63, v0")
    e(f"v_readfirstlane_b32 s{sWave}, v{vQ}")
    e(f"v_lshrrev_b32 v{vQ}, 4, v{vLane}")
    e(f"v_and_b32 v{vL}, 15, v{vLane}")
    e(f"v_lshlrev_b32 v{vL16}, 4, v{vLane}")
    e(f"s_and_b32 s{sI}, s{sWave}, 1")
    e(f"s_lshr_b32 s{sJ}, s{sWave}, 1")
    e(f"s_and_b32 s{sT0}, s2, 3")
    e(f"s_lshl_b32 s{sFS}, s{sT0}, 2")
    e(f"s_bfe_u32 s{sT0}, s2, 0x20003")
    e(f"s_add_u32 s{sFS}, s{sFS}, s{sT0}")
    e(f"s_bfe_u32 s{sT0}, s2, 0x10002")
    e(f"s_lshl_b32 s{sMT}, s{sT0}, 3")
    e(f"s_lshr_b32 s{sT0}, s2, 5")
    e(f"s_add_u32 s{sMT}, s{sMT}, s{sT0}")
    e(f"s_lshl_b32 s{sT0}, s{sI}, 4")
    e(f"v_add_u32 v{vX}, s{sT0}, v{vL}")
    e(f"v_lshlrev_b32 v{vX1}, 4, v{vX}")
    e(f"v_mul_u32_u24 v{vX}, 1152, v{vX}")
    e(f"v_lshl_add_u32 v{vX}, v{vQ}, 4, v{vX}")
    e(f"v_lshl_add_u32 v{vX1}, v{vQ}, 14, v{vX1}")
    e(f"s_mul_i32 s{sXo}, s{sMT}, {128*1152}")
    for st in range(1, 4):
        e(f"s_add_u32 s{sXo+st}, s{sXo}, {st*32*1152}")
    a, b = T+6, T+7
    e(f"v_lshrrev_b32 v{a}, 2, v{vLane}")
    e(f"v_mul_u32_u24 v{DvA}, 9216, v{a}")
    e(f"v_and_b32 v{a}, 32, v{vLane}")
    e(f"v_and_b32 v{vC}, 3, v{vLane}")
    e(f"v_lshlrev_b32 v{b}, 4, v{vC}")
    e(f"v_xor_b32 v{a}, v{a}, v{b}")
    e(f"v_add_u32 v{DvA}, v{DvA}, v{a}")
    e(f"v_add_u32 v{DvA+1}, {16*9216-1024}, v{DvA}")
    e(f"s_mul_i32 s{sT1}, s{sFS}, 576")
    e(f"s_and_b32 s{sT2}, s{sFS}, 1")
    e(f"s_cmp_eq_u32 s{sT2}, 1")
    e(f"s_cselect_b32 s{sT0}, 0, 512")
    e(f"s_add_u32 s{sOff}, s{sT1}, s{sT0}")
    e(f"s_cmp_eq_u32 s{sT2}, 1")
    e(f"s_cselect_b32 s{sT0}, 64, 384")
    e(f"s_add_u32 s{sCol1}, s{sT1}, s{sT0}")
    e(f"s_cmp_eq_u32 s{sT2}, 1")
    e(f"s_cselect_b32 s{sColWrap}, {(128 - 16*KB1) & 0xffffffff}, {(-128 - 16*KB1) & 0xffffffff}") if False else None
    e(f"s_mov_b32 s{sColWrap}, {(-128 - 16*KB1) & 0xffffffff}")
    e(f"s_cselect_b32 s{sColWrap}, {(128 - 16*KB1) & 0xffffffff}, s{sColWrap}")
    e(f"s_mov_b32 s{sUst}, {(-32*1152) & 0xffffffff}")
    e(f"s_cselect_b32 s{sUst}, {32*1152}, s{sUst}")
    e(f"s_cselect_b32 s{sT0}, 0, {256*1152}")
    e(f"s_mul_i32 s{sRow0}, s{sFS}, {288*1152}")
    e(f"s_add_u32 s{sRow0}, s{sRow0}, s{sT0}")
    e(f"s_mul_i32 s{sT0}, s{sJ}, {KB1}")
    e(f"s_add_u32 s{sOff}, s{sOff}, s{sT0}")
    e(f"s_add_u32 s{sCol1}, s{sCol1}, s{sT0}")
    e(f"s_lshl_b32 s{sLds0}, s{sJ}, 13")
    e(f"s_lshl_b32 s{sT0}, s{sI}, 11")
    e(f"s_add_u32 s{sLds0}, s{sLds0}, s{sT0}")
    e(f"s_lshl_b32 s{sLds}, s{sWave}, 12")
    e("s_waitcnt lgkmcnt(0)")
    srd(e, sX, 16, 2048*576*2)
    e(f"s_cmp_eq_u32 s{sI}, 1")
    e(f"s_cselect_b32 s24, s26, s24")
    e(f"s_cselect_b32 s25, s27, s25")
    srd(e, sW1, 24, 576*4608*2)
    srd(e, sGW, 30, 1152)
    e(f"s_cmp_lg_u32 s{sFS}, 2")
    e(f"s_cbranch_scc1 {name}_nogate")
    e(f"v_lshlrev_b32 v{a}, 4, v{vQ}")
    e(f"s_lshl_b32 s{sT0}, s{sWave}, 13")
    e(f"s_add_u32 s{sT0}, s{sT0}, {4096+1024}")
    e(f"s_lshl_b32 s{sT1}, s{sWave}, 6")
    for k in range(5):
        if k == 4:
            e(f"s_cmp_ge_u32 s{sWave}, 2")
            e(f"s_cbranch_scc1 {name}_nogate")
        e(f"s_add_u32 m0, s{sT0}, {k*4*8192}")
        e(f"s_add_u32 s{sT2}, s{sT1}, {k*256}")
        e(f"buffer_load_dwordx4 v{a}, s[{sGW}:{sGW+3}], s{sT2} offen lds")
    e.label(f"{name}_nogate")
    x_id = {}
    dma_last = {}
    def p0_stage_items(sg):
        its = []
        def f0(): e(f"s_add_u32 m0, s{sLds0}, {sg*16384}")
        def f1(): e(f"buffer_load_dwordx4 v{DvA}, s[{sW1}:{sW1+3}], s{sOff} offen lds")
        def f2(): dma_last[sg] = e(f"buffer_load_dwordx4 v{DvA+1}, s[{sW1}:{sW1+3}], s{sOff} offen offset:1024 lds")
        def f3():
            if sg < 8: e(f"s_add_u32 s{sOff}, s{sOff}, {2*KB1}")
            else: e(f"s_mov_b32 s{sOff}, s{sCol1}")
        its += [(f0, 1), (f1, 2), (f2, 2), (f3, 1)]
        for t in (2*sg, 2*sg+1):
            for st in range(4):
                def fx(t=t, st=st): x_id[(t, st)] = e(f"buffer_load_dwordx4 {xreg(t, st)}, v{vX}, s[{sX}:{sX+3}], s{sXo+st} offen offset:{t*64}")
                its.append((fx, 2))
        return its
    NPRE = 5
    for sg in range(NPRE):
        for f, c in p0_stage_items(sg): f()
    srd(e, sWD, 28, 4608*576*2)
    srd(e, sWS, 32, WS_SIZE)
    srd(e, sWR, 18, 2048*289*2)
    srd(e, sWI, 20, 2048*289*2)
    e(f"s_mov_b32 s{sNL2E}, 0xbfb8aa3b")
    e(f"s_mul_i32 s{sHL}, s2, 73728")
    e(f"s_mul_i32 s{sT0}, s{sI}, 36864")
    e(f"s_add_u32 s{sHL}, s{sHL}, s{sT0}")
    e(f"s_add_u32 s{sHL}, s{sHL}, {WS_H}")
    e(f"s_lshl_b32 s{sT0}, s{sJ}, 3")
    e(f"s_add_u32 s{sH0}, s{sHL}, s{sT0}")
    e(f"s_and_b32 s{sT0}, s{sFS}, 1")
    e(f"s_xor_b32 s{sT0}, s{sT0}, 1")
    e(f"s_xor_b32 s{sT3}, s{sT0}, s{sJ}")
    e(f"s_lshl_b32 s{sT3}, s{sT3}, 12")
    e(f"s_add_u32 s{sH}, s{sHL}, s{sT3}")
    e(f"s_lshl_b32 s{sT0}, s{sFS}, 4")
    e(f"s_add_u32 s{sT0}, s{sT0}, s{sMT}")
    e(f"s_lshl_b32 s{sT0}, s{sT0}, 1")
    e(f"s_add_u32 s{sT0}, s{sT0}, s{sI}")
    e(f"s_mul_i32 s{sPb}, s{sT0}, 73728")
    e(f"s_lshl_b32 s{sT0}, s{sJ}, 12")
    e(f"s_add_u32 s{sPb}, s{sPb}, s{sT0}")
    if WS_P: e(f"s_add_u32 s{sPb}, s{sPb}, {WS_P}")
    e(f"s_lshl_b32 s{sT0}, s{sFS}, 1")
    e(f"s_add_u32 s{sT0}, s{sT0}, s{sJ}")
    e(f"s_lshl_b32 s{sX1a}, s{sT0}, 16")
    e(f"s_lshl_b32 s{sT1}, s{sMT}, 9")
    e(f"s_add_u32 s{sX1a}, s{sX1a}, s{sT1}")
    e(f"s_add_u32 s{sX1a}, s{sX1a}, {WS_X1}")
    e(f"s_add_u32 s{sX1b}, s{sX1a}, {32*65536}")
    e(f"s_cmp_lt_u32 s{sT0}, 5")
    e(f"s_cselect_b32 s{sX1b}, s{sX1b}, {OOB}")
    e(f"v_bfe_u32 v{vR4}, v{vLane}, 2, 2")
    e(f"v_lshrrev_b32 v{vF}, 1, v{vR4}")
    e(f"v_and_b32 v{a}, 1, v{vQ}")
    e(f"v_lshl_or_b32 v{vF}, v{a}, 1, v{vF}")
    e(f"v_xor_b32 v{a}, s{sJ}, v{a}")
    e(f"v_lshlrev_b32 v{a}, 5, v{a}")
    e(f"v_lshl_add_u32 v{a}, v{vC}, 3, v{a}")
    e(f"v_lshl_add_u32 v{b}, v{vQ}, 3, v{vR4}")
    e(f"v_lshl_add_u32 v{RdA}, v{b}, 6, v{a}")
    e(f"s_lshl_b32 s{sT0}, s{sJ}, 11")
    e(f"s_add_u32 s{sT0}, s{sT0}, 4096")
    e(f"v_add_u32 v{RdA+1}, s{sT0}, v{vL16}")
    e(f"s_lshl_b32 s{sT0}, s{sJ}, 1")
    e(f"v_xor_b32 v{a}, s{sT0}, v{vF}")
    e(f"v_lshlrev_b32 v{a}, 5, v{a}")
    e(f"v_lshl_add_u32 v{a}, v{vC}, 3, v{a}")
    e(f"v_lshl_add_u32 v{RdB}, v{b}, 7, v{a}")
    e(f"v_xor_b32 v{RdB+1}, 32, v{RdB}")
    for w in (1, 2):
        for k in (0, 1):
            e(f"v_add_u32 v{RdA+2*w+k}, {w*65536}, v{RdA+k}")
            e(f"v_add_u32 v{RdB+2*w+k}, {w*65536}, v{RdB+k}")
    e(f"v_lshrrev_b32 v{a}, 3, v{vLane}")
    e(f"v_mul_u32_u24 v{DvB}, 9216, v{a}")
    e(f"v_and_b32 v{a}, 16, v{vLane}")
    e(f"v_lshlrev_b32 v{a}, 1, v{a}")
    e(f"v_and_b32 v{b}, 0x70, v{vL16}")
    e(f"v_xor_b32 v{a}, v{a}, v{b}")
    e(f"v_xor_b32 v{b}, 64, v{a}")
    e(f"v_add_u32 v{b}, v{DvB}, v{b}")
    e(f"v_add_u32 v{DvB}, v{DvB}, v{a}")
    e(f"v_add_u32 v{DvB+1}, {8*9216-1024}, v{b}")
    e(f"v_add_u32 v{DvB+2}, {16*9216-2048}, v{DvB}")
    e(f"v_add_u32 v{DvB+3}, {24*9216-3072}, v{b}")

    G = ACC[1]
    gK, gPhi, gStep, gM, gInc, gBase, gAddr, gT = G, G+1, G+2, G+3, G+4, G+5, G+6, G+7
    gV = G + 8
    gO = G + 16
    e(f"s_mov_b32 s{sT2}, 0")
    e(f"s_mov_b32 s{sN}, 0x3ae38e39")
    e.label(f"{name}_dftz")
    e(f"s_lshl_b32 s{sT0}, s{sFS}, 1")
    e(f"s_add_u32 s{sT0}, s{sT0}, s{sI}")
    e(f"s_lshl_b32 s{sT1}, s{sT2}, 5")
    e(f"s_add_u32 s{sT0}, s{sT0}, s{sT1}")
    e(f"s_lshl_b32 s{sT0}, s{sT0}, 4")
    e(f"v_add_u32 v{gT}, s{sT0}, v{vL}")
    e(f"v_lshrrev_b32 v{gK}, 1, v{gT}")
    e(f"v_and_b32 v{gPhi}, 1, v{gT}")
    e(f"v_cvt_f32_u32 v{gPhi}, v{gPhi}")
    e(f"v_mul_f32 v{gPhi}, 0.25, v{gPhi}") if False else e(f"v_mul_f32 v{gPhi}, 0x3e800000, v{gPhi}")
    e(f"v_cmp_eq_u32 vcc, 1, v{gT}")
    e(f"v_mov_b32 v{gT}, 288")
    e(f"v_cndmask_b32 v{gK}, v{gK}, v{gT}, vcc")
    e(f"v_cndmask_b32 v{gPhi}, v{gPhi}, 0, vcc")
    e(f"v_cvt_f32_u32 v{gStep}, v{gK}")
    e(f"v_mul_f32 v{gStep}, s{sN}, v{gStep}")
    e(f"s_lshl_b32 s{sT0}, s{sJ}, 5")
    e(f"v_lshl_add_u32 v{gT}, v{vQ}, 3, s{sT0}")
    e(f"v_mul_u32_u24 v{gM}, v{gK}, v{gT}")
    e(f"v_mul_u32_u24 v{gT}, 29128, v{gM}")
    e(f"v_lshrrev_b32 v{gT}, 24, v{gT}")
    e(f"v_mul_u32_u24 v{gT}, 576, v{gT}")
    e(f"v_sub_u32 v{gM}, v{gM}, v{gT}")
    e(f"v_lshlrev_b32 v{gInc}, 6, v{gK}")
    e(f"v_mul_u32_u24 v{gT}, 29128, v{gInc}")
    e(f"v_lshrrev_b32 v{gT}, 24, v{gT}")
    e(f"v_mul_u32_u24 v{gT}, 576, v{gT}")
    e(f"v_sub_u32 v{gInc}, v{gInc}, v{gT}")
    e(f"s_lshl_b32 s{sT0}, s{sT2}, 10")
    e(f"s_add_u32 s{sT0}, s{sT0}, s{sLds0}")
    e(f"s_add_u32 s{sT0}, s{sT0}, 4096")
    e(f"v_add_u32 v{gAddr}, s{sT0}, v{vL16}")
    e(f"s_mov_b32 s{sT1}, 9")
    e.label(f"{name}_dftl")
    e(f"v_cvt_f32_u32 v{gBase}, v{gM}")
    e(f"v_add_u32 v{gM}, v{gM}, v{gInc}")
    e(f"v_fma_f32 v{gV}, v{gBase}, s{sN}, v{gPhi}")
    e(f"v_subrev_u32 v{gT}, 576, v{gM}")
    e(f"v_min_u32 v{gM}, v{gM}, v{gT}")
    e(f"v_add_f32 v{gV+1}, v{gV}, v{gStep}")
    e(f"v_fma_f32 v{gV+2}, 2.0, v{gStep}, v{gV}")
    e(f"v_fma_f32 v{gV+3}, 2.0, v{gStep}, v{gV+1}")
    for k in range(4):
        e(f"v_fma_f32 v{gV+4+k}, 4.0, v{gStep}, v{gV+k}")
    for k in range(8):
        e(f"v_cos_f32 v{gV+k}, v{gV+k}")
    for k in range(4):
        e(f"v_cvt_pk_bf16_f32 v{gO+k}, v{gV+2*k}, v{gV+2*k+1}")
    e(f"s_sub_u32 s{sT1}, s{sT1}, 1")
    e(f"ds_write_b128 v{gAddr}, v[{gO}:{gO+3}]")
    e(f"v_add_u32 v{gAddr}, 16384, v{gAddr}")
    e(f"s_cmp_lg_u32 s{sT1}, 0")
    e(f"s_cbranch_scc1 {name}_dftl")
    e(f"s_add_u32 s{sT2}, s{sT2}, 1")
    e(f"s_cmp_lt_u32 s{sFS}, 2")
    e(f"s_cselect_b32 s{sT0}, 2, 1")
    e(f"s_cmp_lt_u32 s{sT2}, s{sT0}")
    e(f"s_cbranch_scc1 {name}_dftz")
    e(f"s_lshl_b32 s{sT0}, s2, 2")
    e(f"s_add_u32 s{sT0}, s{sT0}, s{sWave}")
    e(f"s_mul_i32 s{sT1}, s{sT0}, 3641")
    e(f"s_lshr_b32 s{sT1}, s{sT1}, 16")
    e(f"s_mul_i32 s{sT2}, s{sT1}, 18")
    e(f"s_sub_u32 s{sT2}, s{sT0}, s{sT2}")
    e(f"s_lshl_b32 s{sT1}, s{sT1}, 4")
    e(f"s_lshl_b32 s{sT2}, s{sT2}, 4")
    e(f"v_add_u32 v{gK}, s{sT1}, v{vL}")
    e(f"v_lshl_add_u32 v{gInc}, v{vQ}, 2, s{sT2}")
    e(f"v_mul_u32_u24 v{gM}, v{gK}, v{gInc}")
    e(f"s_mov_b32 s{sT1}, 7456541")
    e(f"v_mul_hi_u32 v{gT}, v{gM}, s{sT1}")
    e(f"v_mul_u32_u24 v{gT}, 576, v{gT}")
    e(f"v_sub_u32 v{gM}, v{gM}, v{gT}")
    e(f"v_cvt_f32_u32 v{gBase}, v{gM}")
    e(f"v_cvt_f32_u32 v{gStep}, v{gK}")
    e(f"v_mul_f32 v{gV}, s{sN}, v{gBase}")
    e(f"v_mul_f32 v{gStep}, s{sN}, v{gStep}")
    e(f"v_add_f32 v{gV+2}, v{gV}, v{gStep}")
    e(f"v_fma_f32 v{gV+4}, 2.0, v{gStep}, v{gV}")
    e(f"v_fma_f32 v{gV+6}, 2.0, v{gStep}, v{gV+2}")
    for k in range(4):
        e(f"v_sin_f32 v{gV+2*k+1}, v{gV+2*k}")
        e(f"v_cos_f32 v{gV+2*k}, v{gV+2*k}")
    for k in range(4):
        e(f"v_cvt_pk_bf16_f32 v{gO+k}, v{gV+2*k}, v{gV+2*k+1}")
    e(f"v_lshlrev_b32 v{gT}, 31, v{gK}")
    e(f"v_or_b32 v{gT}, 0x3f003f00, v{gT}")
    e(f"v_cmp_eq_u32 vcc, 0, v{gInc}")
    e(f"s_lshl_b32 s{sT1}, s{sT0}, 10")
    e(f"s_add_u32 s{sT1}, s{sT1}, {WS_CF}")
    e(f"v_cndmask_b32 v{gO}, v{gO}, v{gT}, vcc")
    e(f"s_cmp_lt_u32 s{sT0}, 648")
    e(f"s_cselect_b32 s{sT1}, s{sT1}, {OOB}")
    e(f"buffer_store_dwordx4 v[{gO}:{gO+3}], v{vL16}, s[{sWS}:{sWS+3}], s{sT1} offen")
    wA = SP + 24
    wL = SP + 27
    e(f"v_lshlrev_b32 v{wL}, 1, v0")
    e(f"s_and_b32 s{sT0}, s2, 31")
    e(f"s_lshr_b32 s{sT1}, s2, 5")
    e(f"s_lshl_b32 s{sT2}, s{sT1}, 7")
    e(f"s_add_u32 s{sT2}, s{sT2}, s{sT0}")
    e(f"s_mul_i32 s{sWTr}, s{sT2}, {2*578}")
    for r in range(1, 4):
        e(f"s_add_u32 s{sWTr+r}, s{sWTr}, {r*64*578}")
    e(f"s_lshl_b32 s{sT1}, s{sT1}, 10")
    e(f"s_lshl_b32 s{sT0}, s{sT0}, 5")
    e(f"s_add_u32 s{sT0}, s{sT0}, s{sT1}")
    e(f"s_add_u32 s{sT0}, s{sT0}, {WS_WT}")
    for rd in range(3):
        e(f"v_add_u32 v{gK}, {256*rd}, v0")
        e(f"v_lshl_add_u32 v{wA+rd}, v{gK}, 13, s{sT0}")
        if rd >= 1:
            e(f"v_add_u32 v{gT}, {(16 - 289*8192) & 0xffffffff}, v{wA+rd}")
            e(f"v_cmp_le_u32 vcc, 289, v{gK}")
            e(f"v_cndmask_b32 v{wA+rd}, v{wA+rd}, v{gT}, vcc")
        if rd == 2:
            e(f"v_mov_b32 v{gT}, {OOB}")
            e(f"v_cmp_le_u32 vcc, 578, v{gK}")
            e(f"v_cndmask_b32 v{wA+rd}, v{wA+rd}, v{gT}, vcc")
    e.wait_all(vm=False)

    mf = []
    frags = []
    def add_frag(stage, reads):
        frags.append(dict(stage=stage, reads=reads, first=len(mf)))
        return len(frags) - 1
    def tr(base_reg, off, second):
        w, o = off >> 16, off & 0xffff
        return [("tr", base_reg + 2*w, o, 0), ("tr", base_reg + 2*w, o + second, 2)]
    pass_first = []; pass_last = []
    for p in range(5):
        pass_first.append(len(mf))
        for t in range(18):
            sg = p*9 + t//2
            for tau in range(4):
                if p == 0:
                    if tau < 2: rd = tr(RdA, t*8192 + tau*2048, 256)
                    else:
                        off = t*8192 + (tau-2)*1024
                        rd = [("b128", RdA + 1 + 2*(off >> 16), off & 0xffff, 0)]
                else:
                    m, ft = tau % 2, tau // 2
                    rd = tr(RdB + ft, t*8192 + m*4096, 512)
                F = add_frag(sg, rd)
                for st in range(4):
                    mf.append(dict(acc=ACC[p & 1] + tau*16 + st*4, frag=F, b=xreg(t, st), zero=(t == 0),
                                   bdep=("x", t, st) if p == 0 else None))
                frags[F]["last"] = len(mf) - 1
        pass_last.append(len(mf) - 1)
    blocks = [(g, n) for n in range(9) for g in range(4)] + [(g, n) for g in range(4, 9) for n in range(9)]
    gacc = {0: ACC[1], 1: ACC[1] + 32, 2: XT, 3: XT + 32, 4: ACC[0], 5: ACC[0] + 32, 6: ACC[1], 7: ACC[1] + 32, 8: XT}
    g_last = {}; g_first = {}
    p2_first = len(mf)
    for bi, (g, n) in enumerate(blocks):
        sg = 45 + bi // 4
        off = (sg % 9)*16384 + (bi % 4)*4096
        g_first.setdefault(g, len(mf))
        for dt in range(2):
            F = add_frag(sg, tr(RdA + dt, off, 2048))
            for st in range(4):
                mf.append(dict(acc=gacc[g] + dt*16 + st*4, frag=F, b=hreg(n, st), zero=(n == 0), bdep=("h", n, st)))
            frags[F]["last"] = len(mf) - 1
        g_last[g] = len(mf) - 1
    NST = 45 + (len(blocks) + 3)//4
    NM = len(mf)

    frag_lg = {}
    bar_done = set()
    force_vm = {}
    force_lg = {}
    reads = deque()
    cur_stage = -1
    for F, fr in enumerate(frags):
        early = frags[F-D]["first"] if F >= D else -1
        late = frags[F-3]["first"] if F >= 3 else -1
        assert F < NB or frags[F-NB]["last"] <= early
        if fr["stage"] != cur_stage:
            cur_stage = sg = fr["stage"]
            def fb(sg=sg):
                vm = max([dma_last[sg]] + [f() for f in force_vm.get(sg, [])])
                lg = max([-1] + [f() for f in force_lg.get(sg, [])])
                e.wait(vm=vm, lg=lg if lg >= 0 else None)
                e("s_barrier")
                bar_done.add(sg)
            reads.append(Item(fb, 2, early, late))
        buf = AF + 4*(F % NB)
        for k, (kind, vb, off, ro) in enumerate(fr["reads"]):
            def frd(kind=kind, vb=vb, off=off, ro=ro, F=F, buf=buf):
                if kind == "tr": frag_lg[F] = e(f"ds_read_b64_tr_b16 v[{buf+ro}:{buf+ro+1}], v{vb} offset:{off}")
                else: frag_lg[F] = e(f"ds_read_b128 v[{buf}:{buf+3}], v{vb} offset:{off}")
                fr_cnt[F] = fr_cnt.get(F, 0) + 1
            reads.append(Item(frd, 1, early, late))
    fr_cnt = {}
    stage_first = {}
    for F, fr in enumerate(frags): stage_first.setdefault(fr["stage"], fr["first"])

    dma = deque()
    for sg in range(NPRE, 9):
        for f, c in p0_stage_items(sg):
            dma.append(Item(f, c, -1, stage_first[sg-2] - 8, ready=lambda: e.vm - 1 - e.vm_done < 62))
    def full_stage(sg):
        rel = sg - 7
        t0 = frags[[F for F, fr in enumerate(frags) if fr["stage"] == rel][0] - D]["first"]
        span = 32
        late = stage_first[min(rel + 2, NST-1)]
        rdy = lambda rel=rel: rel in bar_done and e.vm - 1 - e.vm_done < 62
        ph2 = sg >= 45
        S = sWD if ph2 else sW1
        V = DvA if ph2 else DvB
        its = []
        def fm(): e(f"s_add_u32 m0, s{sLds}, {(sg % 9)*16384}")
        its.append(Item(fm, 1, t0, late, rdy))
        for k in range(4):
            def fd(k=k):
                o = f" offset:{k*1024}" if k else ""
                dma_last[sg] = e(f"buffer_load_dwordx4 v{V+k}, s[{S}:{S+3}], s{sOff} offen{o} lds")
            its.append(Item(fd, 2, t0 + 2 + k*8, late, rdy))
        nx = sg + 1
        adv = []
        if nx < 45:
            if nx % 9: adv = [f"s_add_u32 s{sOff}, s{sOff}, {2*KB1}"]
            else: adv = [f"s_add_u32 s{sOff}, s{sOff}, s{sColWrap}"]
        elif nx == 45:
            adv = [f"s_lshl_b32 s{sOff}, s{sWave}, 7", f"s_add_u32 s{sOff}, s{sOff}, s{sRow0}"]
        elif nx < 54:
            adv = [f"s_add_u32 s{sOff}, s{sOff}, s{sUst}"]
        elif nx == 54:
            adv = [f"s_mul_i32 s{sOff}, s{sWave}, s{sUst}", f"s_add_u32 s{sOff}, s{sOff}, s{sRow0}",
                   f"s_add_u32 s{sOff}, s{sOff}, 512", f"s_mov_b32 s{sN}, s{sWave}",
                   f"s_mul_i32 s{sWrapN}, s{sUst}, -5", f"s_add_u32 s{sWrapN}, s{sWrapN}, 128",
                   f"s_lshl_b32 s{sUst}, s{sUst}, 2"]
        else:
            adv = [[f"s_cmp_ge_u32 s{sN}, 5", f"s_cselect_b32 s{sT0}, s{sWrapN}, s{sUst}"],
                   [f"s_cselect_b32 s{sT1}, -5, 4", f"s_add_u32 s{sOff}, s{sOff}, s{sT0}"],
                   f"s_add_u32 s{sN}, s{sN}, s{sT1}"]
            adv = [adv[0] + adv[1][:1], adv[1][1], adv[2]]
        for a_ in adv:
            if isinstance(a_, list):
                its.append(Item(lambda a_=a_: [e(x) for x in a_], 2, t0, late))
            else:
                its.append(Item(lambda a_=a_: e(a_), 1, t0, late))
        return its
    wt_id = {}
    wt_items = []
    for rd in range(3):
        for r in range(4):
            for c_, S in ((0, sWR), (1, sWI)):
                def fw(rd=rd, r=r, c_=c_, S=S):
                    wt_id[(rd, r, c_)] = e(f"buffer_load_ushort v{SP + rd*8 + r*2 + c_}, v{wL}, s[{S}:{S+3}], s{sWTr+r} offen offset:{512*rd}")
                wt_items.append(Item(fw, 2, stage_first[4], pass_last[0], ready=lambda: (17, 3) in x_id and e.vm - 1 - e.vm_done < 60))
    for sg in range(9, NST):
        dma.extend(full_stage(sg))
    misc = deque(wt_items)
    t0 = pass_first[1] + 100
    for rd in range(3):
        for r in range(4):
            def fp(rd=rd, r=r):
                e.wait(vm=wt_id[(2, 3, 1)])
                e(f"v_lshl_or_b32 v{SP + rd*8 + r}, v{SP + rd*8 + r*2 + 1}, 16, v{SP + rd*8 + r*2}")
            misc.append(Item(fp, 1, t0, pass_last[1]))
        def fs_(rd=rd): e(f"buffer_store_dwordx4 v[{SP+rd*8}:{SP+rd*8+3}], v{wA+rd}, s[{sWS}:{sWS+3}], 0 offen")
        misc.append(Item(fs_, 2, t0, pass_last[1]))
    t0 = pass_first[2]
    lst = [f"v_lshrrev_b32 v{T}, 8, v{vL16}", f"v_lshlrev_b32 v{T}, 9, v{T}"]
    lst += [f"v_sub_u32 v{RdA+k}, v{RdB+k}, v{T}" for k in range(6)]
    lst += [f"v_lshrrev_b32 v{T}, 7, v{vL16}", f"v_mul_u32_u24 v{DvA}, 1152, v{T}",
            f"v_lshrrev_b32 v{T}, 8, v{vL16}", f"v_lshlrev_b32 v{T}, 5, v{T}",
            f"v_and_b32 v{T+1}, 0x70, v{vL16}", f"v_xor_b32 v{T}, v{T}, v{T+1}", f"v_add_u32 v{DvA}, v{DvA}, v{T}"]
    lst += [f"v_add_u32 v{DvA+k}, {k*(8*1152-1024)}, v{DvA}" for k in range(1, 4)]
    lst += [f"s_lshl_b32 s{sT2}, s{sI}, 13", f"s_add_u32 s{sT2}, s{sT2}, {LDS_X}", f"v_add_u32 v{T+3}, s{sT2}, v{vL16}",
            f"v_add_u32 v{T+2}, s{sT3}, v{T+3}"]
    for x in lst: misc.append(Item(lambda x=x: e(x), 1, t0, pass_last[2]))

    chains = []
    h_store = {}
    h_dep = {}
    xw_id = {}
    def silu_pass(p):
        base = ACC[p & 1]
        t0 = pass_last[p] + 3
        dl = (pass_last[p+1] - 40) if p < 4 else (p2_first + 150)
        if p == 3: dl = pass_first[4] + 200
        nft = 1 if p == 0 else 2
        for st in range(4):
            done = set()
            for ft in range(nft):
                for r in range(4):
                    Gr = base + (2*ft)*16 + st*4 + r
                    Ur = base + (2*ft+1)*16 + st*4 + r
                    ops = [(f"v_mul_f32 v{Ur}, v{Gr}, v{Ur}", 1), (f"v_mul_f32 v{Gr}, s{sNL2E}, v{Gr}", 1),
                           (f"v_exp_f32 v{Gr}, v{Gr}", 2), (f"v_add_f32 v{Gr}, 1.0, v{Gr}", 1),
                           (f"v_rcp_f32 v{Gr}, v{Gr}", 2), (f"v_mul_f32 v{Ur}, v{Gr}, v{Ur}", 1)]
                    ch = deque()
                    for k, (x, c) in enumerate(ops):
                        def f(x=x, last=(k == 5), key=(ft, r), done=done):
                            e(x)
                            if last: done.add(key)
                        ch.append(Item(f, c, t0, dl - 12 + k))
                    chains.append(ch)
            ch = deque()
            dst = base + st*4
            for ft in range(nft):
                for hf in range(2):
                    U = base + (2*ft+1)*16 + st*4 + 2*hf
                    need = {(0, 0), (0, 1), (0, 2), (0, 3), (ft, 2*hf), (ft, 2*hf+1)}
                    ch.append(Item(lambda U=U, d=dst+2*ft+hf: e(f"v_cvt_pk_bf16_f32 v{d}, v{U}, v{U+1}"), 1, t0, dl - 4,
                                   ready=lambda need=need, done=done: need <= done))
            def fst(st=st, dst=dst):
                if p == 0: h_store[p] = e(f"buffer_store_dwordx2 v[{dst}:{dst+1}], v{vL16}, s[{sWS}:{sWS+3}], s{sH0} offen offset:{st*1024}")
                elif p < 4:
                    if st == 0: e(f"s_add_u32 s{sH}, s{sH}, {4096 if p == 1 else 8192}")
                    h_store[p] = e(f"buffer_store_dwordx4 v[{dst}:{dst+3}], v{vL16}, s[{sWS}:{sWS+3}], s{sH} offen offset:{st*1024}")
                else: xw_id[st] = e(f"ds_write_b128 v{T+2}, v[{dst}:{dst+3}] offset:{st*1024}")
                st_done.add((p, st))
            ch.append(Item(fst, 2, t0, dl, ready=lambda st=st: st == 0 or (p, st-1) in st_done))
            chains.append(ch)
        if p == 0:
            for z in range(2):
                A = base + (2+z)*16
                ch = deque()
                seq = [(A+0, A+0), (A+1, A+4), (A+4, A+2), (A+5, A+6), (A+2, A+8), (A+3, A+12), (A+6, A+10), (A+7, A+14)]
                for d, s_ in seq:
                    ch.append(Item(lambda d=d, s_=s_: e(f"v_cvt_pk_bf16_f32 v{d}, v{s_}, v{s_+1}"), 1, t0, dl))
                so = sX1a if z == 0 else sX1b
                ch.append(Item(lambda A=A, so=so: e(f"buffer_store_dwordx4 v[{A}:{A+3}], v{vX1}, s[{sWS}:{sWS+3}], s{so} offen"), 2, t0, dl))
                ch.append(Item(lambda so=so: e(f"s_add_u32 s{so}, s{so}, 8192"), 1, t0, dl))
                ch.append(Item(lambda A=A, so=so: e(f"buffer_store_dwordx4 v[{A+4}:{A+7}], v{vX1}, s[{sWS}:{sWS+3}], s{so} offen"), 2, t0, dl))
                chains.append(ch)
    st_done = set()
    for p in range(5): silu_pass(p)
    hl = deque()
    force_vm[44] = [lambda: h_store[3]]
    for n in range(7):
        src_pass = (n + 1)//2
        kill = pass_first[4] + (n+1)*16 - 1
        for st in range(4):
            def fl(n=n, st=st):
                if st == 0 and n > 0: e(f"s_add_u32 s{sHL}, s{sHL}, 4096")
                h_dep[(n, st)] = ("vm", e(f"buffer_load_dwordx4 {hreg(n, st)}, v{vL16}, s[{sWS}:{sWS+3}], s{sHL} offen offset:{st*1024} sc1"))
            hl.append(Item(fl, 2, kill, p2_first + n*32 - 40 if n < 5 else p2_first + 60,
                           ready=lambda sp=src_pass: (sp, 3) in st_done and h_store[sp] <= e.vm_pub and e.vm - 1 - e.vm_done < 62))
    XB = 51
    force_lg[XB] = [lambda: xw_id[3]]
    for n in (7, 8):
        for st in range(4):
            def fl(n=n, st=st):
                h_dep[(n, st)] = ("lg", e(f"ds_read_b128 {hreg(n, st)}, v{T+3} offset:{(n-7)*4096 + st*1024}"))
            hl.append(Item(fl, 1, p2_first, p2_first + 7*32 - 6, ready=lambda: XB in bar_done))
    pst = deque()
    for g in range(9):
        A = gacc[g]
        t0 = g_last[g] + 3
        nxt = [g_first[g2] for g2 in range(g+1, 9) if gacc[g2] == gacc[g]]
        dl = (nxt[0] - 2) if nxt else INF
        for st in range(4):
            a0, b0 = A + st*4, A + 16 + st*4
            for d, s_ in ((a0, a0), (a0+1, a0+2), (a0+2, b0), (a0+3, b0+2)):
                pst.append(Item(lambda d=d, s_=s_: e(f"v_cvt_pk_bf16_f32 v{d}, v{s_}, v{s_+1}"), 1, t0, dl))
            pst.append(Item(lambda a0=a0, st=st: e(f"buffer_store_dwordx4 v[{a0}:{a0+3}], v{vL16}, s[{sWS}:{sWS+3}], s{sPb} offen offset:{st*1024}{pstore}"), 2, t0, dl,
                            ready=lambda: e.vm - 1 - e.vm_done < 62))
        pst.append(Item(lambda: e(f"s_add_u32 s{sPb}, s{sPb}, 8192"), 1, t0, dl))

    streams = [reads, dma, hl, pst, misc]
    over = 0
    def fill(i, budget):
        nonlocal over
        allst = streams + chains
        used = set()
        for s_ in allst:
            while s_ and s_[0].latest <= i:
                it = s_[0]
                assert it.ready is None or it.ready(), f"forced item not ready at mfma {i}"
                s_.popleft(); it.fn(); budget -= it.cost; used.add(id(s_))
        prog = True
        while budget > 0 and prog:
            prog = False
            for want in ((2, 1) if budget >= 2 else (1,)):
                for s_ in allst:
                    if not s_: continue
                    it = s_[0]
                    if s_ is reads:
                        if id(s_) in used or it.earliest > i or it.cost > budget: continue
                    else:
                        if it.cost != want or it.earliest > i: continue
                        if id(s_) in used and s_ is not pst and s_ is not misc: continue
                        if it.ready is not None and not it.ready(): continue
                    s_.popleft(); it.fn(); budget -= it.cost; used.add(id(s_)); prog = True
                    break
                if prog: break
        if budget < 0: over += -budget
        chains[:] = [c for c in chains if c]
    def deps(i):
        m = mf[i]; vm = lg = None
        F = m["frag"]
        if frags[F]["first"] == i:
            assert fr_cnt.get(F, 0) == len(frags[F]["reads"]), (i, F)
            lg = frag_lg[F]
            if lg > e.lg_done and F + 1 < len(frags) and fr_cnt.get(F+1, 0) == len(frags[F+1]["reads"]):
                lg = frag_lg[F+1]
        bd = m["bdep"]
        if bd:
            if bd[0] == "x": vm = x_id[(bd[1], 3)]
            else:
                k, idd = h_dep[(bd[1], 3)]
                if k == "vm": vm = idd
                else: lg = max(lg if lg is not None else -1, idd)
        return vm, lg
    while reads and reads[0].earliest < 0:
        reads.popleft().fn()
    for i in range(NM):
        m = mf[i]
        vm, lg = deps(i)
        e.wait(vm=vm, lg=lg)
        buf = AF + 4*(m["frag"] % NB)
        acc = f"v[{m['acc']}:{m['acc']+3}]"
        e(f"v_mfma_f32_16x16x32_bf16 {acc}, v[{buf}:{buf+3}], {m['b']}, {'0' if m['zero'] else acc}")
        budget = 2
        if i + 1 < NM:
            F = mf[i+1]["frag"]
            if frags[F]["first"] == i + 1 and frag_lg.get(F, INF) > e.lg_done: budget -= 1
        fill(i, budget)
    for s_ in streams + chains:
        while s_: s_.popleft().fn()
    e.label(f"{name}_end")
    e("s_endpgm")
    e.stats = dict(over=over, nops=e.nops, count=e.count, maxvm=e.maxvm)
    return e

def kdesc(name, vgpr, acc_off, sgpr=102):
    return f""".amdhsa_kernel {name}
  .amdhsa_next_free_vgpr {vgpr}
  .amdhsa_next_free_sgpr {sgpr}
  .amdhsa_accum_offset {acc_off}
  .amdhsa_group_segment_fixed_size 0
  .amdhsa_kernarg_size 88
  .amdhsa_user_sgpr_count 2
  .amdhsa_user_sgpr_kernarg_segment_ptr 1
  .amdhsa_system_sgpr_workgroup_id_x 1
.end_amdhsa_kernel
"""

if __name__ == "__main__":
    e = gen_k1("k1_kernel")
    print(e.stats)
    s = "; @launch kernel=k1_kernel grid=(256,1,1) block=(256,1,1) lds=%d\n" % K1_LDS
    s += '.amdgcn_target "amdgcn-amd-amdhsa--gfx950"\n.text\n' + e.text()
    s += '.section .rodata,"a"\n.p2align 6\n' + kdesc("k1_kernel", 512, 256)
    open("k1_only.s", "w").write(s)
```

```python
from em import Em
from k1 import *

def gen_k2(name, NS=16, W=6):
    e = Em()
    sWS, sOut = 8, 12
    sWave, sMI, sG, sT0, sT1, sP, sZ, sC, sO = 16, 17, 18, 19, 20, 21, 22, 23, 24
    sZi = 25
    vLane, vQ, vL, vL16, vZ, vO, vT = 1, 2, 3, 4, 5, 6, 7
    LG = 8
    OM = 12
    E = 16
    AA = 24
    AB = 56
    ZB = 88
    r4 = lambda b: f"v[{b}:{b+3}]"
    e.raw(f".globl {name}"); e.raw(".p2align 8"); e.raw(f".type {name},@function"); e.label(name)
    e("s_cmp_ge_u32 s2, 288")
    e(f"s_cbranch_scc1 {name}_end")
    e("s_load_dwordx2 s[4:5], s[0:1], 80")
    e("s_load_dwordx2 s[6:7], s[0:1], 64")
    e(f"v_lshrrev_b32 v{vQ}, 6, v0")
    e(f"v_and_b32 v{vLane}, 63, v0")
    e(f"v_readfirstlane_b32 s{sWave}, v{vQ}")
    e(f"v_lshrrev_b32 v{vQ}, 4, v{vLane}")
    e(f"v_and_b32 v{vL}, 15, v{vLane}")
    e(f"v_lshlrev_b32 v{vL16}, 4, v{vLane}")
    e(f"s_lshr_b32 s{sT0}, s2, 3")
    e(f"s_mul_i32 s{sT1}, s{sT0}, 57")
    e(f"s_lshr_b32 s{sT1}, s{sT1}, 9")
    e(f"s_mul_i32 s{sG}, s{sT1}, 9")
    e(f"s_sub_u32 s{sG}, s{sT0}, s{sG}")
    e(f"s_and_b32 s{sMI}, s2, 7")
    e(f"s_lshl_b32 s{sMI}, s{sMI}, 2")
    e(f"s_add_u32 s{sMI}, s{sMI}, s{sT1}")
    e(f"s_lshl_b32 s{sG}, s{sG}, 1")
    e(f"s_add_u32 s{sG}, s{sG}, s{sWave}")
    e(f"s_mul_i32 s{sP}, s{sMI}, 73728")
    e(f"s_lshl_b32 s{sT0}, s{sG}, 12")
    e(f"s_add_u32 s{sP}, s{sP}, s{sT0}")
    if WS_P: e(f"s_add_u32 s{sP}, s{sP}, {WS_P}")
    e(f"s_lshl_b32 s{sZ}, s{sMI}, 8")
    e(f"s_add_u32 s{sT1}, s{sZ}, {WS_X1 + 288*8192}")
    e(f"s_add_u32 s{sZi}, s{sZ}, {WS_Z}")
    for ii in range(1, 4): e(f"s_add_u32 s{sZi+ii}, s{sZi}, {ii*8192}")
    e(f"s_mul_i32 s{sC}, s{sG}, {2*18*1024}")
    e(f"s_add_u32 s{sC}, s{sC}, {WS_CF}")
    e(f"v_lshlrev_b32 v{vT}, 4, v{vL}")
    e(f"v_lshl_add_u32 v{vZ}, v{vQ}, 15, v{vT}")
    e(f"v_add_u32 v{vO}, {18*1024}, v{vL16}")
    e("s_waitcnt lgkmcnt(0)")
    srd(e, sWS, 4, WS_SIZE)
    srd(e, sOut, 6, 2048*576*2)
    lg_id = e(f"buffer_load_dwordx4 {r4(LG)}, v{vT}, s[{sWS}:{sWS+3}], s{sT1} offen")
    ids = {}
    def issue(k):
        if k < 18:
            b = ZB + (k % W)*24
            for ii in range(4):
                e(f"buffer_load_dwordx4 {r4(b+ii*4)}, v{vZ}, s[{sWS}:{sWS+3}], s{sZi+ii} offen")
            e(f"buffer_load_dwordx4 {r4(b+16)}, v{vL16}, s[{sWS}:{sWS+3}], s{sC} offen")
            ids[("z", k)] = e(f"buffer_load_dwordx4 {r4(b+20)}, v{vO}, s[{sWS}:{sWS+3}], s{sC} offen")
            e(f"v_add_u32 v{vZ}, {16*8192}, v{vZ}")
            e(f"s_add_u32 s{sC}, s{sC}, 1024")
        if k < NS:
            for st in range(4):
                ids[("p", k)] = e(f"buffer_load_dwordx4 a[{k*16+st*4}:{k*16+st*4+3}], v{vL16}, s[{sWS}:{sWS+3}], s{sP} offen offset:{st*1024}")
            e(f"s_add_u32 s{sP}, s{sP}, {32*73728}")
    for k in range(W): issue(k)
    e(f"v_lshlrev_b32 v{vT}, 2, v{vQ}")
    e(f"v_sub_u32 v{vT}, v{vL}, v{vT}")
    e(f"v_mov_b32 v{E+2}, 0"); e(f"v_mov_b32 v{E+3}, 0"); e(f"v_mov_b32 v{E+4}, 0"); e(f"v_mov_b32 v{E+5}, 0")
    e(f"v_mov_b32 v{OM}, 0x3f80"); e(f"v_mov_b32 v{OM+1}, 1.0")
    for h in range(2):
        e(f"v_cmp_eq_u32 vcc, {2*h}, v{vT}")
        e(f"v_cndmask_b32 v{E+h}, 0, v{OM}, vcc")
        e(f"v_cmp_eq_u32 vcc, {2*h+1}, v{vT}")
        e(f"v_cndmask_b32 v{E+h}, v{E+h}, v{OM+1}, vcc")
        e(f"v_mov_b32 v{E+6+h}, v{E+h}")
    e(f"s_lshr_b32 s{sT0}, s{sMI}, 1")
    e(f"s_mul_i32 s{sO}, s{sT0}, {128*1152}")
    e(f"s_and_b32 s{sT0}, s{sMI}, 1")
    e(f"s_mul_i32 s{sT0}, s{sT0}, {16*1152}")
    e(f"s_add_u32 s{sO}, s{sO}, s{sT0}")
    e(f"s_lshl_b32 s{sT0}, s{sG}, 6")
    e(f"s_add_u32 s{sO}, s{sO}, s{sT0}")
    e.wait(vm=lg_id)
    for st in range(4):
        e(f"v_lshlrev_b32 v{LG+st}, 16, v{LG+st}")
        e(f"v_mul_f32 v{LG+st}, 0xbfb8aa3b, v{LG+st}")
        e(f"v_exp_f32 v{LG+st}, v{LG+st}")
        e(f"v_add_f32 v{LG+st}, 1.0, v{LG+st}")
        e(f"v_rcp_f32 v{LG+st}, v{LG+st}")
        e(f"v_cvt_pk_bf16_f32 v{LG+st}, v{LG+st}, v{LG+st}")
        e(f"v_and_b32 v{LG+st}, 0xffff0000, v{LG+st}")
        e(f"v_sub_f32 v{OM+st}, 1.0, v{LG+st}")
        e(f"v_cvt_pk_bf16_f32 v{OM+st}, v{OM+st}, v{OM+st}")
        e(f"v_and_b32 v{OM+st}, 0xffff0000, v{OM+st}")
        import struct
        sc = struct.unpack("<I", struct.pack("<f", 2.0/(2048*576)))[0]
        e(f"v_mul_f32 v{LG+st}, {sc:#x}, v{LG+st}")
    for k in range(18):
        b = ZB + (k % W)*24
        e.wait(vm=ids[("z", k)])
        for i_ in range(4):
            for j_ in range(i_+1, 4):
                e(f"v_swap_b32 v{b+4*i_+j_}, v{b+4*j_+i_}")
        for dt in range(2):
            for st in range(4):
                acc = r4(AA + dt*16 + st*4)
                e(f"v_mfma_f32_16x16x32_bf16 {acc}, {r4(b+16+dt*4)}, {r4(b+st*4)}, {'0' if k == 0 else acc}")
        if k < NS:
            e.wait(vm=ids[("p", k)])
            for dt in range(2):
                for st in range(4):
                    acc = r4(AB + dt*16 + st*4)
                    e(f"v_mfma_f32_16x16x32_bf16 {acc}, {r4(E+dt*4)}, a[{k*16+st*4}:{k*16+st*4+3}], {'0' if k == 0 else acc}")
        if k + W < 18: issue(k + W)
    e(f"v_mul_u32_u24 v{vO}, 1152, v{vL}")
    e(f"v_lshl_add_u32 v{vO}, v{vQ}, 3, v{vO}")
    for st in range(4):
        for dt in range(2):
            a0, b0 = AA + dt*16 + st*4, AB + dt*16 + st*4
            for r in range(4):
                e(f"v_mul_f32 v{b0+r}, v{OM+st}, v{b0+r}")
            for r in range(4):
                e(f"v_fmac_f32 v{b0+r}, v{LG+st}, v{a0+r}")
            e(f"v_cvt_pk_bf16_f32 v{a0}, v{b0}, v{b0+1}")
            e(f"v_cvt_pk_bf16_f32 v{a0+1}, v{b0+2}, v{b0+3}")
            e(f"buffer_store_dwordx2 v[{a0}:{a0+1}], v{vO}, s[{sOut}:{sOut+3}], s{sO} offen offset:{dt*32}")
        e(f"s_add_u32 s{sO}, s{sO}, {32*1152}")
    e.label(f"{name}_end")
    e("s_endpgm")
    return e
```

```python
import sys
from k1 import *
from a2 import gen_a2
from k2 import gen_k2

HDR = open("gated_mix__spectral_gfnet__swiglu_ffn__prompt.s.ref").read().split("; Override launch")[0]

def build(path, extra_launch="", extra_code="", extra_desc="", **kw):
    k1 = gen_k1("k1_kernel", code_bytes=38000, **kw)
    a2 = gen_a2("a2_kernel")
    k2 = gen_k2("k2_kernel")
    print(k1.stats, a2.nops, k2.nops)
    s = HDR
    s += "; @launch kernel=k1_kernel grid=(256,1,1) block=(256,1,1) lds=%d\n" % K1_LDS
    s += "; @launch kernel=a2_kernel grid=(288,1,1) block=(256,1,1) lds=8192\n"
    s += "; @launch kernel=k2_kernel grid=(288,1,1) block=(128,1,1) lds=0\n"
    s += extra_launch
    s += '.amdgcn_target "amdgcn-amd-amdhsa--gfx950"\n.text\n' + k1.text() + a2.text() + k2.text() + extra_code
    s += '.section .rodata,"a"\n.p2align 6\n' + kdesc("k1_kernel", 512, 256) + ".p2align 6\n" + kdesc("a2_kernel", 192, 192) + ".p2align 6\n" + kdesc("k2_kernel", 512, 256) + extra_desc
    open(path, "w").write(s)

if __name__ == "__main__":
    build(sys.argv[1] if len(sys.argv) > 1 else "full.s")
```

```python
from gen import *
from em import Em
def k_empty(name):
    e = Em(); e.raw(f".globl {name}"); e.raw(".p2align 8"); e.raw(f".type {name},@function"); e.label(name); e("s_endpgm"); return e.text()
def k_rw(name, write, base, n=36, flags=""):
    e = Em(); e.raw(f".globl {name}"); e.raw(".p2align 8"); e.raw(f".type {name},@function"); e.label(name)
    e("s_cmp_ge_u32 s2, 256"); e(f"s_cbranch_scc1 {name}_end")
    e("s_load_dwordx2 s[4:5], s[0:1], 80")
    e("v_lshrrev_b32 v1, 6, v0"); e("v_and_b32 v2, 63, v0"); e("v_readfirstlane_b32 s12, v1"); e("v_lshlrev_b32 v2, 4, v2")
    if not write:
        e("s_add_u32 s2, s2, 3"); e("s_and_b32 s2, s2, 255")
    e("s_lshl_b32 s13, s2, 2"); e("s_add_u32 s13, s13, s12"); e(f"s_mul_i32 s13, s13, {n*1024}"); e(f"s_add_u32 s13, s13, {base}")
    e("s_waitcnt lgkmcnt(0)")
    srd(e, 8, 4, WS_SIZE)
    for k in range(4): e(f"v_mov_b32 v{4+k}, v0")
    for k in range(n):
        if write: e(f"buffer_store_dwordx4 v[4:7], v2, s[8:11], s13 offen{flags}")
        else: e(f"buffer_load_dwordx4 v[{8+4*k}:{11+4*k}], v2, s[8:11], s13 offen")
        e("s_add_u32 s13, s13, 1024")
    e("s_waitcnt vmcnt(0)")
    e.label(f"{name}_end"); e("s_endpgm"); return e.text()
L = lambda n: f"; @launch kernel={n} grid=(256,1,1) block=(256,1,1) lds=0\n"
D = lambda n: ".p2align 6\n" + kdesc(n, 160, 160)
build("p_base.s")
build("p_empty2.s", L("e_kernel")*2, k_empty("e_kernel"), D("e_kernel"))
build("p_wr128.s", L("w_kernel") + L("r_kernel"), k_rw("w_kernel", 1, 128 << 20) + k_rw("r_kernel", 0, 128 << 20), D("w_kernel") + D("r_kernel"))
build("p_rd128.s", L("e_kernel") + L("r_kernel"), k_empty("e_kernel") + k_rw("r_kernel", 0, 128 << 20), D("e_kernel") + D("r_kernel"))
build("p_rd210.s", L("e_kernel") + L("r_kernel"), k_empty("e_kernel") + k_rw("r_kernel", 0, 210 << 20), D("e_kernel") + D("r_kernel"))
build("p_w128.s", L("w_kernel") + L("e_kernel"), k_rw("w_kernel", 1, 128 << 20) + k_empty("e_kernel"), D("w_kernel") + D("e_kernel"))
```
